```python
import torch

def _softmax(x, axis=-1):
    return torch.softmax(x, dim=axis)
def _gelu(x):
    return torch.nn.functional.gelu(x, approximate="tanh")
def _silu(x):
    return torch.nn.functional.silu(x)
def _sigmoid(x):
    return torch.sigmoid(x)
def _layernorm(x, axis=-1, eps=1e-5):
    m = x.mean(dim=axis, keepdim=True)
    v = x.var(dim=axis, keepdim=True, unbiased=False)
    return (x - m) / torch.sqrt(v + eps)
def _scatter_add(tgt, idx, src, axis=0):
    return tgt.clone().index_add_(axis, idx, src)
def _segment_sum(src, seg, n):
    out = torch.zeros((n,) + src.shape[1:], dtype=src.dtype)
    return out.index_add_(0, seg, src)
def _pad(x, pw):
    flat = tuple(v for pair in reversed(pw) for v in pair)
    return torch.nn.functional.pad(x, flat)

kernel_name = 'sequential_preLN__linear_kernel_hedgehog__glu_gated_glu__prompt'

def setup_inputs():

    _w = (lambda a: (lambda t: t.to(torch.bfloat16) if t.is_floating_point() else t)(torch.as_tensor(a)))
    def _A_setup():
        B, S, D, H = 1, 2048, 1024, 32
        Dh = D // H
        return {
            "x": _w((lambda *s: torch.randn(*s, dtype=torch.bfloat16) * 0.05)(B, S, D)),
            "wqkv": _w((lambda *s: torch.randn(*s, dtype=torch.bfloat16) * 0.2)(D, 3 * D)),
            "w_phi": _w((lambda *s: torch.randn(*s, dtype=torch.bfloat16) * 0.2)(H, Dh, Dh) * (Dh ** -0.5)),
            "wo": _w((lambda *s: torch.randn(*s, dtype=torch.bfloat16) * 0.05)(D, D)),
        }
    _A_in = _A_setup()

    def _B_setup():
        B, S, D, F = 1, 2048, 1024, 3584
        return {
            "x": _w((lambda *s: torch.randn(*s, dtype=torch.bfloat16) * 0.05)(B, S, D)),
            "w_gate": _w((lambda *s: torch.randn(*s, dtype=torch.bfloat16) * 0.05)(D, F)),
            "w_up": _w((lambda *s: torch.randn(*s, dtype=torch.bfloat16) * 0.05)(D, F)),
            "w_down": _w((lambda *s: torch.randn(*s, dtype=torch.bfloat16) * 0.05)(F, D)),
        }
    _B_in = _B_setup()

    return {
        "A_x": _A_in["x"],
        "A_wqkv": _A_in["wqkv"],
        "A_w_phi": _A_in["w_phi"],
        "A_wo": _A_in["wo"],
        "B_x": _B_in["x"],
        "B_w_gate": _B_in["w_gate"],
        "B_w_up": _B_in["w_up"],
        "B_w_down": _B_in["w_down"],
    }

def reference(A_x, A_wqkv, A_w_phi, A_wo, B_x, B_w_gate, B_w_up, B_w_down):
    def _A_ref(x, wqkv, w_phi, wo):
        B, S, D = x.shape
        H = 32; Dh = D // H
        qkv = (lambda x, *d: x.permute(*d))((x @ wqkv).reshape(B, S, 3, H, Dh), 2, 0, 3, 1, 4)
        q, k, v = qkv[0], qkv[1], qkv[2]
        pq = torch.einsum("bhsd,hdf->bhsf", q, w_phi)
        pk = torch.einsum("bhsd,hdf->bhsf", k, w_phi)
        phi_q = torch.concatenate([_softmax(pq, axis=-1), _softmax(-pq, axis=-1)], axis=-1)
        phi_k = torch.concatenate([_softmax(pk, axis=-1), _softmax(-pk, axis=-1)], axis=-1)
        kv = torch.einsum("bhsf,bhsd->bhfd", phi_k, v)
        z  = torch.einsum("bhsf->bhf", phi_k)
        num = torch.einsum("bhqf,bhfd->bhqd", phi_q, kv)
        den = torch.einsum("bhqf,bhf->bhq", phi_q, z)[..., None] + 1e-6
        o = num / den
        return (lambda x, *d: x.permute(*d))(o, 0, 2, 1, 3).reshape(B, S, D) @ wo

    def _B_ref(x, w_gate, w_up, w_down):
        g = torch.einsum("bsd,df->bsf", x, w_gate)
        u = torch.einsum("bsd,df->bsf", x, w_up)
        h = _sigmoid(g) * u
        return torch.einsum("bsf,fd->bsd", h, w_down)

    x = A_x
    h = x + _A_ref(_layernorm(x, axis=-1), A_wqkv, A_w_phi, A_wo)
    h2 = h + _B_ref(_layernorm(h, axis=-1), B_w_gate, B_w_up, B_w_down)
    return h2
```

```python
import re

class Asm:
    def __init__(self):
        self.lines = []
        self.uid = 0
    def __call__(self, s):
        for l in s.strip('\n').split('\n'):
            l = l.strip()
            if l: self.lines.append('  ' + l)
    def label(self, name):
        self.lines.append(name + ':')
    def newlabel(self, base):
        self.uid += 1
        return f'L_{base}_{self.uid}'
    def raw(self, s):
        self.lines.append(s)
    def text(self, fix=True):
        lines = fix_hazards(self.lines) if fix else self.lines
        return '\n'.join(lines) + '\n'

_reg_re = re.compile(r'(?<![\w.])([vas])(?:\[(\d+):(\d+)\]|(\d+))(?![\w])')
def regs_of(op):
    out = set()
    for m in _reg_re.finditer(op):
        f = m.group(1)
        if m.group(2) is not None:
            for i in range(int(m.group(2)), int(m.group(3))+1): out.add(f + str(i))
        else:
            out.add(f + m.group(4))
    for sp in ('vcc', 'exec', 'm0'):
        if re.search(r'(?<![\w])' + sp + r'(_lo|_hi)?(?![\w])', op): out.add(sp)
    return out

TRANS = ('v_exp_f32','v_log_f32','v_rcp_f32','v_rsq_f32','v_sqrt_f32','v_sin_f32','v_cos_f32')
class Ins:
    def __init__(self, line):
        self.line = line
        s = line.split(';')[0].strip()
        self.is_ins = bool(s) and not s.endswith(':') and not s.startswith('.')
        self.is_label = s.endswith(':')
        self.mn = ''; self.w = set(); self.r = set(); self.srcc = set(); self.ab = set(); self.data = set()
        self.kind = 'other'
        if not self.is_ins: return
        p = s.split(None, 1)
        mn = p[0]; self.mn = mn
        rest = p[1] if len(p) > 1 else ''
        ops = [o.strip() for o in re.split(r',(?![^\[]*\])', rest)]
        self.ops = ops
        R = [regs_of(o) for o in ops]
        allr = lambda lst: set().union(*lst) if lst else set()
        if mn.startswith('v_mfma'):
            self.kind = 'mfma'; self.w = R[0]; self.ab = R[1] | R[2]; self.srcc = R[3]; self.r = self.ab | self.srcc
            self.passes = 4 if '16x16x32' in mn else 8
        elif mn.startswith('v_'):
            self.kind = 'valu'
            if mn.startswith('v_cmp'):
                self.w = R[0]; self.r = allr(R[1:])
                if mn.startswith('v_cmpx'): self.w = self.w | {'exec'}
            elif mn.startswith('v_permlane') and 'swap' in mn:
                self.w = R[0] | R[1]; self.r = R[0] | R[1]
            elif '_co_' in mn or mn.startswith('v_div_scale') or mn.startswith('v_mad_u64'):
                self.w = R[0] | R[1]; self.r = allr(R[2:])
            else:
                self.w = R[0]; self.r = allr(R[1:])
                if mn.startswith(('v_fmac','v_dot2c','v_pk_fmac','v_writelane')) or 'dpp' in s or 'row_' in s or 'quad_perm' in s: self.r = self.r | R[0]
            self.trans = mn.replace('_e32','').replace('_e64','') in TRANS
            self.dpp = ('row_' in s or 'quad_perm' in s or 'wave_' in s)
            self.dl = mn.startswith('v_dot')
        elif mn.startswith(('buffer_','global_','flat_')):
            self.kind = 'vmem'
            self.lds = bool(re.search(r'\blds\b', rest)) or '_lds_' in mn
            isload = '_load' in mn
            if mn in ('buffer_wbl2','buffer_inv'): pass
            elif isload and not self.lds:
                self.w = R[0]; self.r = allr(R[1:])
            elif isload:
                self.r = allr(R) | {'m0'}
            else:
                self.r = allr(R)
                if mn.startswith('buffer_'): self.data = R[0]
                else: self.data = R[1] if not (' sc0' in rest and 'atomic' in mn) else R[2]
                if 'atomic' in mn and re.search(r'\bsc0\b', rest): self.w = R[0]
            self.wide = ('x4' in mn or 'x3' in mn) and not isload
        elif mn.startswith('ds_'):
            self.kind = 'ds'
            if mn.startswith(('ds_read','ds_bpermute','ds_permute','ds_swizzle')):
                self.w = R[0]; self.r = allr(R[1:])
            else:
                self.r = allr(R)
        elif mn.startswith('s_'):
            self.kind = 'salu'
            if mn.startswith(('s_cmp','s_waitcnt','s_barrier','s_nop','s_branch','s_cbranch','s_endpgm','s_setprio','s_sleep','s_bitcmp')):
                self.r = allr(R)
            else:
                self.w = R[0] if R else set(); self.r = allr(R[1:])
                if 'saveexec' in mn: self.w = self.w | {'exec'}
    def states(self):
        if not self.is_ins: return 0
        if self.mn == 's_nop': return int(self.ops[0], 0) + 1
        return 1

def need(p, c):
    n = 0
    vec = lambda S: {x for x in S if x[0] in 'va' and x != 'vcc'}
    sc = lambda S: {x for x in S if x[0] == 's' or x == 'vcc'}
    if p.kind == 'mfma':
        big = {4: 8, 8: 12}[p.passes]
        if c.kind == 'mfma':
            if p.w & c.ab: n = max(n, big)
            if p.w & c.srcc and p.w != c.srcc: n = max(n, {4: 6, 8: 10}[p.passes])
            if p.w & c.srcc and p.w == c.srcc and p.passes != c.passes: n = max(n, {4: 6, 8: 10}[p.passes])
            if p.w & c.w and not (p.w & c.srcc): n = max(n, big)
        elif c.kind in ('valu', 'vmem', 'ds'):
            if p.w & (c.r | c.w): n = max(n, big)
        if c.kind == 'valu' and p.srcc & c.w: n = max(n, {4: 3, 8: 7}[p.passes])
    if p.kind == 'valu':
        if c.kind == 'mfma' and vec(p.w) & c.r: n = max(n, 2)
        if c.kind == 'mfma' and 'exec' in p.w: n = max(n, 4)
        if c.kind == 'valu':
            if c.mn.startswith('v_permlane') and vec(p.w) & c.r: n = max(n, 2)
            if c.dpp and vec(p.w) & c.r: n = max(n, 2)
            if c.dpp and 'exec' in p.w: n = max(n, 5)
            if c.mn.startswith(('v_readlane','v_readfirstlane')) and vec(p.w) & c.r: n = max(n, 1)
            if c.mn.startswith(('v_readlane','v_writelane')) and sc(p.w) & c.r: n = max(n, 4)
            if sc(p.w) & c.r: n = max(n, 2)
            if p.trans and vec(p.w) & c.r: n = max(n, 1)
            if p.dl and vec(p.w) & (c.r | c.w): n = max(n, 3)
            if 'exec' in p.w and c.mn.startswith(('v_readlane','v_readfirstlane','v_writelane','v_permlane')): n = max(n, 4)
        if c.kind == 'vmem' and sc(p.w) & c.r: n = max(n, 5)
        if p.trans and c.kind in ('vmem','ds','mfma') and vec(p.w) & c.r: n = max(n, 2)
        if p.dl and c.kind in ('vmem','ds','mfma') and vec(p.w) & c.r: n = max(n, 3)
    if p.kind == 'salu':
        if 'm0' in p.w and c.kind == 'vmem' and getattr(c, 'lds', False): n = max(n, 1)
    if p.kind == 'vmem' and getattr(p, 'wide', False):
        if p.data & c.w: n = max(n, 2)
    return n

def fix_hazards(lines):
    ins = [Ins(l) for l in lines]
    labels = {i.line.strip()[:-1]: k for k, i in enumerate(ins) if i.is_label}
    out = []
    hist = []
    pos_out = {}
    for k, c in enumerate(ins):
        if c.is_ins:
            d = 0; req = 0
            for p in reversed(hist):
                if d >= 14: break
                nn = need(p, c) - d
                if nn > req: req = nn
                d += p.states()
            if req > 0:
                nop = Ins(f'  s_nop {req-1}')
                out.append(nop); hist.append(nop)
            hist.append(c)
        out.append(c)
    labels = {i.line.strip()[:-1]: k for k, i in enumerate(out) if i.is_label}
    for k, b in enumerate(out):
        if b.is_ins and b.mn.startswith(('s_branch','s_cbranch')):
            t = labels.get(b.ops[0])
            if t is None: continue
            pre = [x for x in out[max(0,k-20):k+1] if x.is_ins]
            post = [x for x in out[t:t+24] if x.is_ins]
            for ci, c in enumerate(post):
                d = sum(x.states() for x in post[:ci])
                for p in reversed(pre):
                    if d >= 14: break
                    if need(p, c) > d:
                        raise Exception(f'hazard across branch {b.line}: {p.line} -> {c.line} need {need(p,c)} have {d}')
                    d += p.states()
    return [i.line for i in out]

def kernel_header(a, name):
    a.raw(f'.globl {name}'); a.raw('.p2align 8'); a.raw(f'.type {name},@function'); a.label(name)

def kernel_desc(name, vgpr, accum, sgpr=102, wgy=False):
    s = f'''.amdhsa_kernel {name}
  .amdhsa_next_free_vgpr {vgpr}
  .amdhsa_next_free_sgpr {sgpr}
  .amdhsa_accum_offset {accum}
  .amdhsa_group_segment_fixed_size 0
  .amdhsa_kernarg_size 88
  .amdhsa_user_sgpr_count 2
  .amdhsa_user_sgpr_kernarg_segment_ptr 1
  .amdhsa_system_sgpr_workgroup_id_x 1
  .amdhsa_float_denorm_mode_32 3
'''
    if wgy: s += '  .amdhsa_system_sgpr_workgroup_id_y 1\n'
    s += '.end_amdhsa_kernel\n'
    return s

def file_text(launches, body, descs, extra_comment=''):
    t = extra_comment
    for (k, g, b, lds) in launches:
        t += f'; @launch kernel={k} grid=({g},1,1) block=({b},1,1) lds={lds}\n'
    t += '.amdgcn_target "amdgcn-amd-amdhsa--gfx950"\n.text\n'
    t += body
    t += '.section .rodata,"a"\n'
    for d in descs:
        t += '.p2align 6\n' + d
    return t
```

```python
import sys
from asmlib import *

XN    = 0x0000000
O     = 0x0400000
HC    = 0x0800000
HH    = 0x0C00000
KVACC = 0x1A00000
ZACC  = 0x1A40000
STAT1 = 0x1A80000
RSWO  = 0x1A90000
SSQ   = 0x1AA0000
MEANH = 0x1AC0000
STAMP = 0x8000000
WS_USED = 0x1B00000
A_X, A_WQKV, A_WPHI, A_WO, A_BX, A_WG, A_WU, A_WD, A_OUT, A_DBG, A_WS = [8*i for i in range(11)]
LOG2E = 1.4426950408889634
MF = 'v_mfma_f32_16x16x32_bf16'
import struct
def f2u(x): return hex(struct.unpack('<I', struct.pack('<f', x))[0])

class Vm:
    def __init__(self, a): self.a = a; self.ops = []
    def issue(self, text, tag):
        self.a(text); self.ops.append(tag)
    def count_for(self, tags):
        last = -1
        for i, t in enumerate(self.ops):
            if t in tags: last = i
        assert last >= 0, tags
        return len(self.ops) - 1 - last
    def wait(self, tags, lgkm=None):
        n = self.count_for(tags)
        assert n <= 63, n
        self.a(f's_waitcnt vmcnt({n})' + (f' lgkmcnt({lgkm})' if lgkm is not None else ''))

def srd(a, d, base, off, size):
    if off:
        a(f's_add_u32 s{d}, s{base}, {hex(off)}'); a(f's_addc_u32 s{d+1}, s{base+1}, 0')
    else:
        a(f's_mov_b32 s{d}, s{base}'); a(f's_mov_b32 s{d+1}, s{base+1}')
    a(f's_mov_b32 s{d+2}, {hex(size)}'); a(f's_mov_b32 s{d+3}, 0x00020000')

def vr(b, n=4): return f'v[{b}:{b+n-1}]' if n > 1 else f'v{b}'
def ar(b, n=4): return f'a[{b}:{b+n-1}]' if n > 1 else f'a{b}'

def stamp(a, cfg, idx, ws=4):
    if cfg.get('stamps'):
        a(f's_memrealtime s[{80+2*idx}:{81+2*idx}]')
        a(f's_memtime s[{60+2*idx}:{61+2*idx}]')
def stamp_out(a, cfg, kidx, n, ws=4, tmp=8):
    if cfg.get('stamps'):
        a('s_waitcnt lgkmcnt(0)')
        a(f's_lshl_b32 s3, s2, 6')
        a(f's_add_u32 s3, s3, {hex(STAMP + kidx*0x10000)}')
        a(f'v_mov_b32 v{tmp}, s3')
        for i in range(n):
            a(f'v_mov_b32 v{tmp+1}, s{80+2*i}')
            a(f'global_store_dword v{tmp}, v{tmp+1}, s[{ws}:{ws+1}] offset:{4*i}')
            a(f'v_mov_b32 v{tmp+1}, s{60+2*i}')
            a(f'global_store_dword v{tmp}, v{tmp+1}, s[{ws}:{ws+1}] offset:{32+4*i}')

def gen_k3(a, cfg):
    name = 'k3_kernel'
    kernel_header(a, name)
    vm = Vm(a)
    NW = cfg.get('k3_nw', 8); TB = 16//NW; NR = 8//NW
    P = cfg.get('k3_P', 3); R = 4
    agpr = NW == 4
    SET = TB*8
    V_ACT = 16; V_W = V_ACT + 4*SET; V_ACC = V_W + 16
    accr = (lambda b, n=4: ar(b, n)) if agpr else (lambda b, n=4: vr(V_ACC + b, n))
    V_DMA = 4
    V_AO = 8
    V_L0, V_L1 = 10, 11
    nodma, noact, nolds = cfg.get('nodma'), cfg.get('noact'), cfg.get('nolds')
    a(f"""
    s_cmp_ge_u32 s2, 256
    s_cbranch_scc1 L_k3_end
    s_load_dwordx2 s[4:5], s[0:1], {A_WS}
    s_load_dwordx4 s[8:11], s[0:1], {A_WG}
    """)
    stamp(a, cfg, 0)
    a(f"""
    v_lshrrev_b32 v2, 6, v0
    v_and_b32 v1, 63, v0
    v_readfirstlane_b32 s24, v2
    s_and_b32 s25, s2, 7                 ; xcd
    s_lshr_b32 s26, s2, 3                ; slot
    s_and_b32 s27, s25, 1
    s_lshl_b32 s27, s27, 2
    s_and_b32 s28, s26, 3
    s_add_u32 s27, s27, s28
    s_lshr_b32 s28, s25, 1
    s_lshl_b32 s28, s28, 3
    s_lshr_b32 s29, s26, 2
    s_add_u32 s28, s28, s29
    s_and_b32 s29, s28, 1                ; j&1
    s_lshl_b32 s30, s29, 1               ; 2*(j&1)
    s_lshr_b32 s31, s24, 1
    s_mul_i32 s31, s31, {16*7168}
    s_mul_i32 s32, s28, 224
    s_add_u32 s31, s31, s32
    s_mov_b32 s33, 7168
    s_mov_b32 s34, 4682
    """)
    for u in range(4):
        a(f"""
        v_add_u32 v12, {u*64}, v1
        v_mul_u32_u24 v13, s34, v12
        v_lshrrev_b32 v13, 16, v13           ; row
        v_mul_u32_u24 v14, 14, v13
        v_sub_u32 v14, v12, v14              ; col16
        v_add_u32 v14, s30, v14
        v_subrev_u32 v15, 14, v14
        v_min_u32 v14, v14, v15
        v_lshlrev_b32 v14, 4, v14
        v_mad_u32_u24 v14, v13, s33, v14
        v_add_u32 v14, s31, v14
        v_subrev_u32 v{V_DMA+u}, {u*1024}, v14
        """)
    a(f"""
    v_mov_b32 v12, 0x40000000
    v_cmp_gt_u32 vcc, 32, v1
    v_cndmask_b32 v{V_DMA+3}, v12, v{V_DMA+3}, vcc
    s_lshl_b32 s35, s27, 4
    s_mul_i32 s36, s24, {TB}
    s_add_u32 s35, s35, s36              ; tb0
    s_lshl_b32 s36, s35, 15
    v_lshlrev_b32 v12, 4, v1
    v_add_u32 v{V_AO}, s36, v12
    v_lshrrev_b32 v13, 2, v1
    v_mul_u32_u24 v13, 224, v13
    v_and_b32 v14, 3, v1
    v_lshl_add_u32 v{V_L0}, v14, 3, v13
    v_add_u32 v{V_L1}, 0x10000, v{V_L0}
    s_lshl_b32 s37, s24, 12
    s_bitcmp1_b32 s24, 0
    s_waitcnt lgkmcnt(0)
    s_cselect_b32 s12, s10, s8
    s_cselect_b32 s13, s11, s9
    s_mov_b32 s14, {1024*7168}
    s_mov_b32 s15, 0x00020000
    """)
    srd(a, 16, 4, HC, 4 << 20)
    srd(a, 20, 4, HH, 128*112*1024)
    def dma(s):
        out = []
        for rg in range(NR):
            out.append([('s', f's_add_u32 m0, s37, {(s % 4)*32768 + rg*16384}'), ('s', f's_mov_b32 s38, {(s*64 + rg*32)*7168}')])
            for u in range(4):
                out.append([('v', f'buffer_load_dwordx4 v{V_DMA+u}, s[12:15], s38 offen offset:{u*1024} lds', ('dma', s))])
        return out
    def act(s):
        out = []
        for t in range(TB):
            out.append([('s', f's_mov_b32 s39, {s*2048 + t*32768}')])
            for kb in range(2):
                r = V_ACT + (s % 4)*SET + (kb*TB + t)*4
                out.append([('v', f'buffer_load_dwordx4 {vr(r)}, v{V_AO}, s[16:19], s39 offen offset:{kb*1024}', ('act', s))])
        return out
    def emit(slot):
        for x in slot:
            if x[0] == 's': a(x[1])
            else: vm.issue(x[1], x[2])
    for sl in dma(0) + act(0): emit(sl)
    for i in range(TB*56):
        a(f'v_accvgpr_write_b32 a{i}, 0' if agpr else f'v_mov_b32 v{V_ACC+i}, 0')
    for sl in dma(1) + act(1) + act(2): emit(sl)
    if noact:
        for sl in act(3): emit(sl)
    if nodma:
        for sl in dma(2) + dma(3): emit(sl)
    NST = 16
    def wread(F):
        s, f = divmod(F, 28)
        kb, idx = divmod(f, 14)
        c, mat = idx >> 1, idx & 1
        slot = s % 4
        base = V_L0 if slot < 2 else V_L1
        off = (slot & 1)*32768 + c*32
        r = V_W + (F % R)*4
        if nolds and F >= 4: return []
        return [f'ds_read_b64_tr_b16 {vr(r,2)}, v{base} offset:{off + ((2*kb)*2+mat)*4096}',
                f'ds_read_b64_tr_b16 {vr(r+2,2)}, v{base} offset:{off + ((2*kb+1)*2+mat)*4096}']
    vm.wait([('dma', 0), ('act', 0)])
    a('s_barrier')
    stamp(a, cfg, 1)
    for F in range(P):
        for x in wread(F): a(x)
    if cfg.get('k3_prio'):
        a(f's_cmp_ge_u32 s24, 4'); a('s_cbranch_scc0 L_k3_np'); a('s_setprio 1'); a.label('L_k3_np')
    for s in range(NST):
        pend = []
        if s + 2 < NST and not nodma: pend += dma(s+2)
        if s + 3 < NST and not noact: pend += act(s+3)
        if s == 13:
            pend.append([('s', 'v_and_b32 v12, 15, v1'), ('s', 'v_lshrrev_b32 v13, 4, v1')])
            pend.append([('s', 'v_lshlrev_b32 v12, 6, v12'), ('s', 'v_lshl_add_u32 v12, v13, 4, v12')])
            pend.append([('s', 's_lshl_b32 s36, s35, 10'), ('s', f's_add_u32 s36, s36, {hex(SSQ)}')])
            pend.append([('s', 'v_add_u32 v12, s36, v12')])
            for t in range(TB):
                pend.append([('v', f'global_load_dwordx4 {vr(V_ACT+4*t)}, v12, s[4:5] offset:{1024*t}', 'ssq')])
        for f in range(28):
            F = s*28 + f
            kb, idx = divmod(f, 14)
            nxt = F + P
            rd = wread(nxt) if nxt < NST*28 else []
            remaining = min(F + P - 1, NST*28 - 1) - F
            a(f's_waitcnt lgkmcnt({2*remaining})')
            w = V_W + (F % R)*4
            for t in range(TB):
                acc = accr((idx*TB + t)*4)
                b = V_ACT + (s % 4)*SET + (kb*TB + t)*4
                a(f'{MF} {acc}, {vr(w)}, {vr(b)}, {acc}')
                if t == 0:
                    if f == 28 - P and s + 1 < NST:
                        tags = [x for x in [('dma', s+1), ('act', s+1)] if x in vm.ops]
                        if tags: vm.wait(tags)
                        a('s_barrier')
                    for x in rd: a(x)
                elif t == (1 if TB == 2 else 2) and pend and f < 28 - P:
                    emit(pend.pop(0))
        assert not pend
    stamp(a, cfg, 2)
    T = V_ACT
    S = T + 16
    vm.wait(['ssq'])
    for t in range(0, TB, 2):
        q = T + 4*t
        a(f"""
        v_add_f32 v{q}, v{q}, v{q+1}
        v_add_f32 v{q+2}, v{q+2}, v{q+3}
        v_add_f32 v{q+4}, v{q+4}, v{q+5}
        v_add_f32 v{q+6}, v{q+6}, v{q+7}
        v_add_f32 v{q}, v{q}, v{q+2}
        v_add_f32 v{q+1}, v{q+4}, v{q+6}
        v_permlane16_swap_b32 v{q}, v{q+1}
        v_add_f32 v{q}, v{q}, v{q+1}           ; rows: [A01,B01,A23,B23]
        v_mov_b32 v{q+1}, v{q}
        v_permlane32_swap_b32 v{q}, v{q+1}
        v_add_f32 v{q}, v{q}, v{q+1}           ; rows: [A,B,A,B]
        v_mov_b32 v{q+2}, {f2u(1e-5)}
        v_fmac_f32 v{q+2}, {f2u(1.0/1024)}, v{q}
        v_rsq_f32 v{q}, v{q+2}
        v_mul_f32 v{S+t}, v{q}, v{q+2}
        v_mul_f32 v{S+4+t}, {f2u(-LOG2E)}, v{q}
        v_mov_b32 v{S+t+1}, v{S+t}
        v_mov_b32 v{S+4+t+1}, v{S+4+t}
        v_permlane16_swap_b32 v{S+t}, v{S+t+1}
        v_permlane16_swap_b32 v{S+4+t}, v{S+4+t+1}
        """)
    a(f"""
    s_mul_i32 s40, s28, 7
    s_add_u32 s41, s40, s29
    s_lshr_b32 s41, s41, 1
    s_add_u32 s42, s41, 3
    s_lshl_b32 s43, s29, 2
    s_sub_u32 s42, s42, s43
    s_lshl_b32 s41, s41, 10
    s_lshl_b32 s42, s42, 10
    s_lshl_b32 s43, s29, 3
    s_add_u32 s42, s42, s43
    s_mul_i32 s44, s35, {112*1024}
    v_lshlrev_b32 v12, 4, v1
    v_add_u32 v12, s44, v12
    """)
    for t in range(1, TB): a(f'v_add_u32 v{12+t}, {t*112*1024}, v12')
    E = T + 24
    ob = 0
    for c2 in range(4):
        for t in range(TB):
            cs = [2*c2, 2*c2+1] if c2 < 3 else [6]
            o = E + (ob % 2)*4; ob += 1
            for ci, c in enumerate(cs):
                gi = ((2*c)*TB + t)*4; ui = ((2*c+1)*TB + t)*4
                if agpr:
                    g = E + 8 + ci*8; u = g + 4
                    for r in range(4): a(f'v_accvgpr_read_b32 v{g+r}, a{gi+r}')
                    for r in range(4): a(f'v_accvgpr_read_b32 v{u+r}, a{ui+r}')
                else:
                    g = V_ACC + gi; u = V_ACC + ui
                for r in range(4): a(f'v_mul_f32 v{g+r}, v{S+4+t}, v{g+r}')
                for r in range(4): a(f'v_exp_f32 v{g+r}, v{g+r}')
                for r in range(4): a(f'v_fma_f32 v{g+r}, v{g+r}, v{S+t}, v{S+t}')
                for r in range(4): a(f'v_rcp_f32 v{g+r}, v{g+r}')
                for r in range(4): a(f'v_mul_f32 v{u+r}, v{g+r}, v{u+r}')
                a(f'v_cvt_pk_bf16_f32 v{o+2*ci}, v{u}, v{u+1}')
                a(f'v_cvt_pk_bf16_f32 v{o+2*ci+1}, v{u+2}, v{u+3}')
            if c2 < 3:
                a(f'buffer_store_dwordx4 {vr(o)}, v{12+t}, s[20:23], s41 offen offset:{c2*1024}')
            else:
                a(f'buffer_store_dwordx2 {vr(o,2)}, v{12+t}, s[20:23], s42 offen')
    stamp(a, cfg, 3)
    if cfg.get('stamps'):
        a('s_waitcnt vmcnt(0)')
        stamp(a, cfg, 4)
        stamp_out(a, cfg, 3, 5)
    a.label('L_k3_end')
    a('s_endpgm')
    if agpr: return (name, 256, 256, 131072), kernel_desc(name, V_ACC + 224, V_ACC)
    return (name, 256, 512, 131072), kernel_desc(name, V_ACC + 112, V_ACC + 112)


def allred4(a, A, B, C, D, op, mid=None):
    a(f'v_permlane16_swap_b32 v{A}, v{B}')
    a(f'v_permlane16_swap_b32 v{C}, v{D}')
    a(f'{op} v{A}, v{A}, v{B}')
    a(f'{op} v{C}, v{C}, v{D}')
    a(f'v_permlane32_swap_b32 v{A}, v{C}')
    a(f'{op} v{A}, v{A}, v{C}')
    if mid: mid(A)
    a(f'v_mov_b32 v{C}, v{A}')
    a(f'v_permlane32_swap_b32 v{A}, v{C}')
    a(f'v_mov_b32 v{B}, v{A}')
    a(f'v_mov_b32 v{D}, v{C}')
    a(f'v_permlane16_swap_b32 v{A}, v{B}')
    a(f'v_permlane16_swap_b32 v{C}, v{D}')

def gen_k0(a, cfg):
    name = 'k0_kernel'
    kernel_header(a, name)
    a(f"""
    s_cmp_ge_u32 s2, 256
    s_cbranch_scc1 L_k0_end
    s_load_dwordx2 s[4:5], s[0:1], {A_WS}
    s_load_dwordx2 s[6:7], s[0:1], {A_X}
    s_load_dwordx2 s[8:9], s[0:1], {A_WO}
    """)
    stamp(a, cfg, 0)
    a(f"""
    v_lshrrev_b32 v2, 6, v0
    v_and_b32 v1, 63, v0
    v_readfirstlane_b32 s24, v2
    v_lshlrev_b32 v3, 4, v1
    s_lshl_b32 s25, s2, 2
    s_add_u32 s25, s25, s24
    s_lshl_b32 s26, s25, 12
    s_lshl_b32 s27, s25, 11
    v_add_u32 v4, s26, v3
    v_add_u32 v5, s27, v3
    s_waitcnt lgkmcnt(0)
    global_load_dwordx4 v[8:11], v4, s[6:7]
    global_load_dwordx4 v[12:15], v4, s[6:7] offset:1024
    global_load_dwordx4 v[16:19], v4, s[6:7] offset:2048
    global_load_dwordx4 v[20:23], v4, s[6:7] offset:3072
    global_load_dwordx4 v[24:27], v5, s[8:9]
    global_load_dwordx4 v[28:31], v5, s[8:9] offset:1024
    v_mov_b32 v6, 0
    s_lshl_b32 s28, s25, 8
    s_add_u32 s28, s28, {hex(KVACC)}
    v_lshl_add_u32 v7, v1, 2, s28
    global_store_dword v7, v6, s[4:5] sc1
    s_cmp_ge_u32 s25, 32
    s_cbranch_scc1 L_k0_noz
    v_add_u32 v7, {hex(ZACC-KVACC)}, v7
    global_store_dword v7, v6, s[4:5] sc1
    """)
    a.label('L_k0_noz')
    X = 32
    a('s_mov_b32 s29, 0xffff0000')
    a('s_waitcnt vmcnt(1)')
    for rr in range(3):
        for i in range(8):
            a(f'v_lshlrev_b32 v{X+rr*16+2*i}, 16, v{8+rr*8+i}')
            a(f'v_and_b32 v{X+rr*16+2*i+1}, s29, v{8+rr*8+i}')
    def tree(dst, src, op2):
        for i in range(8): a(f'v_add_f32 v{80+i}, v{src+2*i}, v{src+2*i+1}')
        for i in range(4): a(f'v_add_f32 v{80+i}, v{80+i}, v{84+i}')
        a(f'v_add_f32 v80, v80, v82'); a(f'v_add_f32 v81, v81, v83'); a(f'v_add_f32 v{dst}, v80, v81')
    def rowred(regs):
        for sh in (8, 4, 2, 1):
            for r in regs: a(f'v_add_f32_dpp v{r}, v{r}, v{r} row_ror:{sh} row_mask:0xf bank_mask:0xf')
    for rr in range(3): tree(8+rr, X+rr*16, None)
    a('v_mov_b32 v11, 0')
    rowred([8, 9, 10])
    allred4(a, 8, 9, 10, 11, 'v_add_f32', lambda r: a(f'v_mul_f32 v{r}, {f2u(1.0/1024)}, v{r}'))
    for rr in range(2):
        for i in range(16): a(f'v_sub_f32 v{X+rr*16+i}, v{X+rr*16+i}, v{8+rr}')
    for rr in range(2):
        for i in range(4): a(f'v_mul_f32 v{80+i}, v{X+rr*16+i}, v{X+rr*16+i}')
        for i in range(4, 16): a(f'v_fmac_f32 v{80+(i&3)}, v{X+rr*16+i}, v{X+rr*16+i}')
        a(f'v_add_f32 v80, v80, v82'); a(f'v_add_f32 v81, v81, v83'); a(f'v_add_f32 v{12+rr}, v80, v81')
    a('v_mov_b32 v14, 0'); a('v_mov_b32 v15, 0')
    rowred([12, 13])
    def mid(r):
        a(f'v_mov_b32 v16, {f2u(1e-5)}')
        a(f'v_fmac_f32 v16, {f2u(1.0/1024)}, v{r}')
        a(f'v_mov_b32 v{r}, v16')
    allred4(a, 12, 13, 14, 15, 'v_add_f32', mid)
    a('v_rsq_f32 v14, v12'); a('v_rsq_f32 v15, v13')
    for rr in range(2):
        for i in range(16): a(f'v_mul_f32 v{X+rr*16+i}, v{14+rr}, v{X+rr*16+i}')
        for i in range(8): a(f'v_cvt_pk_bf16_f32 v{16+rr*8+i}, v{X+rr*16+2*i}, v{X+rr*16+2*i+1}')
    RS = 2080
    a(f"""
    s_mul_i32 s28, s24, {2*RS}
    v_add_u32 v4, s28, v3
    ds_write_b128 v4, v[16:19]
    ds_write_b128 v4, v[20:23] offset:1024
    ds_write_b128 v4, v[24:27] offset:{RS}
    ds_write_b128 v4, v[28:31] offset:{RS+1024}
    v_mul_f32 v33, v12, v14
    v_mul_f32 v35, v13, v15
    v_mov_b32 v32, v8
    v_mov_b32 v34, v9
    v_cvt_pk_bf16_f32 v36, v10, v10
    v_lshlrev_b32 v37, 16, v36
    v_sub_f32 v37, v10, v37
    v_cvt_pk_bf16_f32 v37, v37, v37
    s_lshl_b32 s28, s25, 4
    s_add_u32 s28, s28, {hex(STAT1)}
    v_mov_b32 v5, s28
    s_lshr_b32 s30, s25, 5
    s_lshl_b32 s30, s30, 7
    s_bfe_u32 s31, s25, 0x20002
    s_lshl_b32 s31, s31, 4
    s_add_u32 s30, s30, s31
    s_and_b32 s31, s25, 3
    s_lshl_b32 s31, s31, 1
    s_add_u32 s30, s30, s31
    s_bfe_u32 s31, s25, 0x10004
    s_lshl_b32 s31, s31, 3
    s_add_u32 s30, s30, s31
    s_add_u32 s30, s30, {hex(RSWO)}
    v_mov_b32 v6, s30
    s_mov_b64 s[32:33], exec
    s_mov_b64 exec, 1
    global_store_dwordx4 v5, v[32:35], s[4:5]
    global_store_short v6, v36, s[4:5]
    global_store_short v6, v37, s[4:5] offset:64
    s_mov_b64 exec, s[32:33]
    v_and_b32 v4, 7, v1
    v_bfe_u32 v5, v1, 3, 2
    v_lshrrev_b32 v6, 5, v1
    v_mul_u32_u24 v7, {RS}, v4
    v_lshl_add_u32 v7, v5, 3, v7
    v_lshl_add_u32 v7, v6, 6, v7
    s_lshl_b32 s28, s24, 9
    v_add_u32 v7, s28, v7
    v_lshlrev_b32 v4, 4, v4
    v_lshl_add_u32 v4, v5, 8, v4
    v_lshl_add_u32 v4, v6, 10, v4
    s_lshr_b32 s28, s2, 1
    s_lshl_b32 s28, s28, 15
    s_lshl_b32 s29, s24, 13
    s_add_u32 s28, s28, s29
    s_and_b32 s29, s2, 1
    s_lshl_b32 s29, s29, 7
    s_add_u32 s28, s28, s29
    s_add_u32 s28, s28, {hex(XN+4096)}
    v_add_u32 v4, s28, v4
    s_waitcnt lgkmcnt(0)
    s_barrier
    """)
    for u in range(4):
        a(f'ds_read_b64 v[{8+4*u}:{9+4*u}], v7 offset:{u*128}')
        a(f'ds_read_b64 v[{10+4*u}:{11+4*u}], v7 offset:{u*128+32}')
    for u in range(4):
        a(f's_waitcnt lgkmcnt({6-2*u})')
        a(f'global_store_dwordx4 v4, v[{8+4*u}:{11+4*u}], s[4:5] offset:{u*2048-4096}')
    stamp(a, cfg, 1)
    if cfg.get('stamps'):
        a('s_waitcnt vmcnt(0)')
        stamp(a, cfg, 2)
        stamp_out(a, cfg, 0, 3, tmp=40)
    a.label('L_k0_end')
    a('s_endpgm')
    return (name, 256, 256, 8*RS), kernel_desc(name, 96, 96)

def unit_dma_voff(a, dst, stride, sbase):
    a(f"""
    v_lshrrev_b32 v12, 3, v1              ; r
    v_bfe_u32 v13, v1, 1, 2
    v_lshrrev_b32 v14, 1, v12
    v_xor_b32 v13, v13, v14
    v_and_b32 v14, 1, v1
    v_lshlrev_b32 v14, 4, v14
    v_lshl_add_u32 v13, v13, 5, v14
    v_mul_u32_u24 v12, {stride}, v12
    v_add3_u32 v{dst}, v12, v13, s{sbase}
    """)
    for u in range(1, 4): a(f'v_add_u32 v{dst+u}, {u*(8*stride-1024)}, v{dst}')
def unit_read_addr(a, dst, nwin):
    a(f"""
    v_lshrrev_b32 v12, 2, v1
    v_bfe_u32 v13, v1, 3, 2               ; (r>>1)&3
    v_and_b32 v14, 3, v1
    v_lshlrev_b32 v14, 3, v14
    v_lshl_add_u32 v14, v13, 5, v14
    v_lshl_add_u32 v{dst}, v12, 7, v14
    """)
    for c in range(1, 4): a(f'v_xor_b32 v{dst+c}, {32*c}, v{dst}')
    for w in range(1, nwin):
        for c in range(4): a(f'v_add_u32 v{dst+4*w+c}, {w*65536}, v{dst+c}')

def gen_g64(a, cfg, which):
    k2 = which == 2
    name = f'k{which}_kernel'; L = f'L_k{which}'
    kernel_header(a, name)
    vm = Vm(a)
    NST = 8 if k2 else 28
    U = 8 if k2 else 7
    D = cfg.get(f'k{which}_D', 4)
    NIT = NST // U
    KB = NST*4
    P = 3; R = 4
    V_DMA = 4; V_AO = 8; V_L = 16; V_W = 24; V_ACC = 40; V_RES = 72; V_ST = 88; V_M = 96; V_RS = 104; V_RA = 112
    RS_LDS = U*16384
    a(f"""
    s_cmp_ge_u32 s2, 256
    s_cbranch_scc1 {L}_end
    s_load_dwordx2 s[4:5], s[0:1], {A_WS}
    s_load_dwordx2 s[6:7], s[0:1], {A_WO if k2 else A_WD}
    s_load_dwordx2 s[8:9], s[0:1], {A_OUT}
    """)
    stamp(a, cfg, 0)
    a(f"""
    v_lshrrev_b32 v2, 6, v0
    v_and_b32 v1, 63, v0
    v_readfirstlane_b32 s24, v2          ; wave
    s_and_b32 s25, s2, 7
    s_lshr_b32 s26, s2, 3
    s_lshr_b32 s27, s25, 1
    s_lshl_b32 s27, s27, 2
    s_and_b32 s28, s26, 3
    s_add_u32 s27, s27, s28
    s_and_b32 s28, s25, 1
    s_lshl_b32 s28, s28, 3
    s_lshr_b32 s29, s26, 2
    s_add_u32 s28, s28, s29
    s_lshl_b32 s30, s24, 16
    s_lshl_b32 s31, s28, 7
    s_add_u32 s30, s30, s31
    s_lshl_b32 s35, s27, 3
    s_lshl_b32 s36, s24, 1
    s_add_u32 s35, s35, s36              ; tb0
    s_mul_i32 s36, s35, {KB*1024}
    v_lshlrev_b32 v3, 4, v1
    v_add_u32 v{V_AO}, s36, v3
    v_add_u32 v{V_AO+1}, {KB*1024}, v{V_AO}
    """)
    unit_dma_voff(a, V_DMA, 2048, 30)
    a(f"""
    s_lshl_b32 s37, s24, 12
    s_lshl_b32 s36, s35, 15
    s_lshl_b32 s31, s28, 11
    s_add_u32 s36, s36, s31
    v_add_u32 v10, s36, v3
    v_add_u32 v11, 0x8000, v10
    v_and_b32 v15, 15, v1
    s_lshl_b32 s31, s35, 4
    v_add_u32 v15, s31, v15
    s_waitcnt lgkmcnt(0)
    """)
    srd(a, 12, 6, 0, KB*32*2048)
    srd(a, 16, 4, O if k2 else HH, 128*KB*1024)
    srd(a, 20, 4, XN if k2 else HC, 4 << 20)
    for t in range(2):
        for kb in range(2):
            vm.issue(f'buffer_load_dwordx4 {vr(V_RES+(t*2+kb)*4)}, v{10+t}, s[20:23], 0 offen offset:{kb*1024}', 'res')
    if k2:
        a(f'v_lshlrev_b32 v12, 3, v15'); a(f'v_add_u32 v12, {hex(STAT1)}, v12')
        for t in range(2): vm.issue(f'global_load_dwordx2 {vr(V_ST+2*t,2)}, v12, s[4:5] offset:{t*128}', 'res')
        srd(a, 44, 4, RSWO, 4096)
        a(f's_lshl_b32 s31, s24, 10'); a(f's_add_u32 m0, s31, {RS_LDS}')
        vm.issue(f'buffer_load_dwordx4 v3, s[44:47], s31 offen lds', 'res')
    else:
        a(f'v_lshlrev_b32 v12, 2, v15'); a(f'v_add_u32 v12, {hex(MEANH)}, v12')
        for t in range(2): vm.issue(f'global_load_dword v{V_ST+t}, v12, s[4:5] offset:{t*64}', 'res')
    a('s_mov_b32 s38, 0'); a('s_mov_b32 s39, 0'); a(f's_mov_b32 s40, {D}')
    def loads(s):
        out = [[('s', f's_add_u32 m0, s37, {(s % U)*16384}')]]
        for u in range(4):
            out.append([('v', f'buffer_load_dwordx4 v{V_DMA+u}, s[12:15], s38 offen offset:{u*1024} lds', ('ld', s))])
        for kb in range(4):
            for t in range(2):
                r = (s % U)*32 + (kb*2 + t)*4
                out.append([('v', f'buffer_load_dwordx4 {ar(r)}, v{V_AO+t}, s[16:19], s39 offen offset:{kb*1024}', ('ld', s))])
        out.append([('s', f's_add_u32 s38, s38, {128*2048}'), ('s', 's_add_u32 s39, s39, 4096')])
        return out
    def emit(slot):
        for x in slot:
            if x[0] == 's': a(x[1])
            else: vm.issue(x[1], x[2])
    for s in range(D):
        for sl in loads(s): emit(sl)
        if s == 0:
            unit_read_addr(a, V_L, 2)
            if k2:
                a(f"""
                v_and_b32 v12, 1, v1
                v_lshrrev_b32 v13, 4, v1
                v_lshlrev_b32 v12, 6, v12
                v_lshl_add_u32 v12, v13, 4, v12
                v_add_u32 v{V_RA}, {RS_LDS}, v12
                """)
                for i in range(8): a(f'v_mov_b32 v{V_M+i}, 0')
    vm.wait(['res'])
    a('s_mov_b32 s29, 0xffff0000')
    for t in range(2):
        for c in range(4):
            src = V_RES + (t*2 + (c >> 1))*4 + (c & 1)*2
            acc = V_ACC + (c*2 + t)*4
            for h in range(2):
                a(f'v_lshlrev_b32 v{acc+2*h}, 16, v{src+h}')
                a(f'v_and_b32 v{acc+2*h+1}, s29, v{src+h}')
            for r in range(4):
                if k2: a(f'v_mul_f32 v{acc+r}, v{V_ST+2*t+1}, v{acc+r}')
                else: a(f'v_add_f32 v{acc+r}, v{V_ST+t}, v{acc+r}')
    FPS = 20 if k2 else 16
    def wread(F):
        s, f = divmod(F, FPS)
        slot = s % U
        r = V_W + (F % R)*4
        if k2:
            kb, c = divmod(f, 5)
            if c == 4:
                return [f'ds_read_b128 {vr(r)}, v{V_RA} offset:{(s*4+kb)*128}']
        else:
            kb, c = divmod(f, 4)
        base = V_L + 4*(slot >> 2) + c
        off = (slot & 3)*16384 + kb*4096
        return [f'ds_read_b64_tr_b16 {vr(r,2)}, v{base} offset:{off}', f'ds_read_b64_tr_b16 {vr(r+2,2)}, v{base} offset:{off+2048}']
    vm.wait([('ld', 0)])
    a('s_barrier')
    stamp(a, cfg, 1)
    for F in range(P):
        for x in wread(F): a(x)
    if NIT > 1:
        a.raw('.p2align 3')
        a.label(f'{L}_loop')
    for s in range(U):
        last = (NIT == 1 and s == U-1)
        pend = []
        if NIT > 1:
            pend = [[('s', f's_cmp_lt_u32 s40, {NST}'), ('s', f's_cselect_b32 s14, s14, 0')], [('s', f's_cselect_b32 s18, s18, 0'), ('s', 's_add_u32 s40, s40, 1')]] + loads(s+D)
        elif s + D < NST:
            pend = loads(s+D)
        for f in range(FPS):
            F = s*FPS + f
            kb, c = divmod(f, 5 if k2 else 4)
            nxt = F + P
            rd = [] if (NIT == 1 and nxt >= NST*FPS) else wread(nxt % (U*FPS))
            n = sum(len(wread(x % (U*FPS))) for x in range(F+1, F+P) if not (NIT == 1 and x >= NST*FPS))
            a(f's_waitcnt lgkmcnt({n})')
            w = V_W + (F % R)*4
            for t in range(2):
                acc = vr(V_ACC + (c*2 + t)*4) if c < 4 else vr(V_M + t*4)
                b = ar(s*32 + (kb*2 + t)*4)
                a(f'{MF} {acc}, {vr(w)}, {b}, {acc}')
                if t == 0:
                    if f == FPS - P and not last:
                        vm.wait([('ld', s+1)])
                        a('s_barrier')
                    for x in rd: a(x)
                elif f < FPS - P:
                    if pend: emit(pend.pop(0))
                    if pend and len(pend) > FPS - P - 1 - f: emit(pend.pop(0))
        assert not pend
    if NIT > 1:
        a(f's_cmp_lt_u32 s40, {NST + D}')
        a(f's_cbranch_scc1 {L}_loop')
    stamp(a, cfg, 2)
    T = V_RES
    if k2:
        a(f'v_add_f32 v{V_M}, v{V_M}, v{V_M+1}')
        a(f'v_add_f32 v{V_M+4}, v{V_M+4}, v{V_M+5}')
        for t in range(2):
            for c in range(4):
                acc = V_ACC + (c*2 + t)*4
                for r in range(4): a(f'v_sub_f32 v{acc+r}, v{acc+r}, v{V_M+4*t}')
                a(f'v_cvt_pk_bf16_f32 v{T+t*8+c*2}, v{acc}, v{acc+1}')
                a(f'v_cvt_pk_bf16_f32 v{T+t*8+c*2+1}, v{acc+2}, v{acc+3}')
        srd(a, 20, 4, HC, 4 << 20)
        for t in range(2):
            for kb in range(2):
                a(f'buffer_store_dwordx4 {vr(T+t*8+kb*4)}, v{10+t}, s[20:23], 0 offen offset:{kb*1024}')
        Q = V_W
        for t in range(2):
            for c in range(4):
                acc = V_ACC + (c*2 + t)*4
                for r in range(4):
                    if c == 0: a(f'v_mul_f32 v{Q+t*4+r}, v{acc+r}, v{acc+r}')
                    else: a(f'v_fmac_f32 v{Q+t*4+r}, v{acc+r}, v{acc+r}')
        a(f"""
        v_add_f32 v{Q}, v{Q}, v{Q+1}
        v_add_f32 v{Q+2}, v{Q+2}, v{Q+3}
        v_add_f32 v{Q+4}, v{Q+4}, v{Q+5}
        v_add_f32 v{Q+6}, v{Q+6}, v{Q+7}
        v_add_f32 v{Q}, v{Q}, v{Q+2}
        v_add_f32 v{Q+1}, v{Q+4}, v{Q+6}
        v_add_f32 v{Q+2}, v{V_M}, v{V_ST}
        v_add_f32 v{Q+3}, v{V_M+4}, v{V_ST+2}
        v_permlane16_swap_b32 v{Q}, v{Q+1}
        v_permlane16_swap_b32 v{Q+2}, v{Q+3}      ; rows [m0,m1,m0,m1]
        v_add_f32 v{Q}, v{Q}, v{Q+1}
        v_mov_b32 v{Q+1}, v{Q}
        v_permlane32_swap_b32 v{Q}, v{Q+1}
        v_add_f32 v{Q}, v{Q}, v{Q+1}
        s_lshl_b32 s31, s35, 4
        v_add_u32 v12, s31, v1
        v_lshlrev_b32 v13, 2, v12
        v_add_u32 v13, {hex(MEANH)}, v13
        v_lshlrev_b32 v12, 6, v12
        s_lshl_b32 s31, s28, 2
        s_add_u32 s31, s31, {hex(SSQ)}
        v_add_u32 v12, s31, v12
        s_mov_b32 exec_hi, 0
        global_store_dword v12, v{Q}, s[4:5]
        s_cmp_eq_u32 s28, 0
        s_cbranch_scc0 {L}_nomean
        global_store_dword v13, v{Q+2}, s[4:5]
        """)
        a.label(f'{L}_nomean')
    else:
        OUTL = U*16384
        a(f"""
        v_and_b32 v12, 15, v1
        v_lshrrev_b32 v13, 4, v1              ; g
        v_and_b32 v14, 7, v12
        v_lshlrev_b32 v14, 1, v14
        v_xor_b32 v13, v13, v14
        v_lshlrev_b32 v13, 3, v13
        v_lshl_add_u32 v12, v12, 7, v13
        s_add_u32 s31, s37, {OUTL}
        v_add_u32 v12, s31, v12
        v_lshrrev_b32 v13, 3, v1
        v_and_b32 v14, 7, v1
        v_xor_b32 v15, v14, v13
        v_lshlrev_b32 v15, 4, v15
        v_lshl_add_u32 v15, v13, 7, v15
        v_add_u32 v15, s31, v15
        v_lshlrev_b32 v14, 4, v14
        v_lshl_add_u32 v14, v13, 11, v14
        s_lshl_b32 s31, s35, 15
        s_lshl_b32 s29, s28, 7
        s_add_u32 s31, s31, s29
        v_add_u32 v14, s31, v14
        """)
        for c in range(1, 4): a(f'v_xor_b32 v{V_L+c}, {32*c}, v12')
        a(f'v_mov_b32 v{V_L}, v12')
        for t in range(2):
            for c in range(4):
                acc = V_ACC + (c*2 + t)*4
                o = T + (t*4 + c)*2
                a(f'v_cvt_pk_bf16_f32 v{o}, v{acc}, v{acc+1}')
                a(f'v_cvt_pk_bf16_f32 v{o+1}, v{acc+2}, v{acc+3}')
                a(f'ds_write_b64 v{V_L+c}, {vr(o,2)} offset:{t*2048}')
        srd(a, 20, 8, 0, 4 << 20)
        a('s_waitcnt lgkmcnt(0)')
        for u in range(4): a(f'ds_read_b128 {vr(V_ACC+4*u)}, v15 offset:{u*1024}')
        for u in range(4):
            a(f's_mov_b32 s31, {u*16384}')
            a(f's_waitcnt lgkmcnt({3-u})')
            a(f'buffer_store_dwordx4 {vr(V_ACC+4*u)}, v14, s[20:23], s31 offen')
    stamp(a, cfg, 3)
    if cfg.get('stamps'):
        a('s_waitcnt vmcnt(0)')
        stamp(a, cfg, 4)
        stamp_out(a, cfg, which, 5)
    a.label(f'{L}_end')
    a('s_endpgm')
    return (name, 256, 256, U*16384 + 16384), kernel_desc(name, 128 + U*32, 128)
def gen_k2(a, cfg): return gen_g64(a, cfg, 2)
def gen_k4(a, cfg): return gen_g64(a, cfg, 4)


def softmax_pm(a, Pq, OUT, T):
    E = T + 16
    MX, MN, SP, SN = T, T+4, T+8, T+12
    for n in range(4):
        p = Pq + 8*n
        for op, d in (('max', MX+n), ('min', MN+n)):
            a(f'v_{op}3_f32 v{d}, v{p}, v{p+1}, v{p+2}')
            a(f'v_{op}3_f32 v{d}, v{d}, v{p+3}, v{p+4}')
            a(f'v_{op}3_f32 v{d}, v{d}, v{p+5}, v{p+6}')
            a(f'v_{op}_f32 v{d}, v{d}, v{p+7}')
    allred4(a, MX, MX+1, MX+2, MX+3, 'v_max_f32', lambda r: a(f'v_mul_f32 v{r}, {f2u(-LOG2E)}, v{r}'))
    allred4(a, MN, MN+1, MN+2, MN+3, 'v_min_f32', lambda r: a(f'v_mul_f32 v{r}, {f2u(LOG2E)}, v{r}'))
    for n in range(4):
        p = Pq + 8*n; e = E + 8*n
        for i in range(8): a(f'v_fma_f32 v{e+i}, v{p+i}, -s50, v{MN+n}')
        for i in range(8): a(f'v_fma_f32 v{p+i}, v{p+i}, s50, v{MX+n}')
        for i in range(8): a(f'v_exp_f32 v{e+i}, v{e+i}')
        for i in range(8): a(f'v_exp_f32 v{p+i}, v{p+i}')
        for src, d in ((e, SN+n), (p, SP+n)):
            o = OUT + 8*n
            for i in range(4): a(f'v_add_f32 v{o+i}, v{src+2*i}, v{src+2*i+1}')
            a(f'v_add_f32 v{o}, v{o}, v{o+1}'); a(f'v_add_f32 v{o+2}, v{o+2}, v{o+3}'); a(f'v_add_f32 v{d}, v{o}, v{o+2}')
    allred4(a, SP, SP+1, SP+2, SP+3, 'v_add_f32', lambda r: a(f'v_rcp_f32 v{r}, v{r}'))
    allred4(a, SN, SN+1, SN+2, SN+3, 'v_add_f32', lambda r: a(f'v_rcp_f32 v{r}, v{r}'))
    for n in range(4):
        for src, sc, o in ((Pq + 8*n, SP+n, OUT + 8*n), (E + 8*n, SN+n, OUT + 8*n + 4)):
            for i in range(8): a(f'v_mul_f32 v{src+i}, v{sc}, v{src+i}')
            for i in range(4): a(f'v_cvt_pk_bf16_f32 v{o+i}, v{src+2*i}, v{src+2*i+1}')

def gen_k1(a, cfg):
    name = 'k1_kernel'; L = 'L_k1'
    kernel_header(a, name)
    vm = Vm(a)
    NS = 6; D = cfg.get('k1_D', 3); DA = cfg.get('k1_DA', 4)
    P = 3; R = 4
    STG = NS*16384
    WPH = STG + 49152
    V_DMA = 4; V_AO = 8; V_L = 16; V_W = 24; V_ACC = 40
    V_WP = 104
    V_F = 120
    V_P = 136
    V_O = 168
    V_T = 200
    V_X = 248
    a(f"""
    s_cmp_ge_u32 s2, 256
    s_cbranch_scc1 {L}_end
    s_load_dwordx2 s[4:5], s[0:1], {A_WS}
    s_load_dwordx4 s[8:11], s[0:1], {A_WQKV}
    s_load_dwordx2 s[6:7], s[0:1], {A_DBG}
    """)
    stamp(a, cfg, 0)
    a(f"""
    v_lshrrev_b32 v2, 6, v0
    v_and_b32 v1, 63, v0
    v_readfirstlane_b32 s24, v2          ; wave
    s_and_b32 s25, s2, 7
    s_lshr_b32 s26, s2, 3
    s_and_b32 s27, s25, 1
    s_lshl_b32 s27, s27, 3
    s_and_b32 s28, s26, 7
    s_add_u32 s27, s27, s28
    s_lshr_b32 s28, s25, 1
    s_lshl_b32 s28, s28, 2
    s_lshr_b32 s29, s26, 3
    s_add_u32 s28, s28, s29
    s_lshl_b32 s30, s28, 7
    s_lshl_b32 s35, s27, 3
    s_lshl_b32 s36, s24, 1
    s_add_u32 s35, s35, s36              ; tb0
    s_lshl_b32 s36, s35, 15
    v_lshlrev_b32 v3, 4, v1
    v_add_u32 v{V_AO}, s36, v3
    v_add_u32 v{V_AO+1}, 0x8000, v{V_AO}
    """)
    unit_dma_voff(a, V_DMA, 6144, 30)
    a(f"""
    s_lshl_b32 s37, s24, 12
    s_lshr_b32 s41, s24, 1
    s_mul_i32 s41, s41, {32*6144}
    s_and_b32 s42, s24, 1
    s_lshl_b32 s42, s42, 11
    s_add_u32 s41, s41, s42
    s_add_u32 s41, s41, 2048
    s_mul_i32 s42, s24, {32*6144}
    s_mov_b32 s50, {f2u(LOG2E)}
    s_waitcnt lgkmcnt(0)
    """)
    srd(a, 12, 8, 0, 1024*6144)
    srd(a, 16, 4, XN, 4 << 20)
    srd(a, 44, 10, 0, 65536)
    NKV, NQ = 16, 8
    NST = NKV + NQ
    SIG = cfg.get('k1_sig', 21)
    def dma(s):
        if s < NKV: so = f's_add_u32 s38, s41, {s*64*6144}'
        else: so = f's_add_u32 s38, s42, {(s-NKV)*128*6144}'
        out = [[('s', f's_add_u32 m0, s37, {(s % NS)*16384}'), ('s', so)]]
        for u in range(4):
            out.append([('v', f'buffer_load_dwordx4 v{V_DMA+u}, s[12:15], s38 offen offset:{u*1024} lds', ('dma', s))])
        return out
    def act(s):
        out = []
        if s % 2 == 0: out.append([('s', f's_mov_b32 s39, {s*2048}')])
        for kb in range(2):
            for t in range(2):
                r = ((2*s + kb)*2 + t)*4
                out.append([('v', f'buffer_load_dwordx4 {ar(r)}, v{V_AO+t}, s[16:19], s39 offen offset:{((s % 2)*2 + kb)*1024}', ('act', s))])
        return out
    def emit(slot):
        for x in slot:
            if x[0] == 's': a(x[1])
            else: vm.issue(x[1], x[2])
    for s in range(max(D, DA)):
        if s < D:
            for sl in dma(s): emit(sl)
        if s < DA:
            for sl in act(s): emit(sl)
        if s == 0:
            unit_read_addr(a, V_L, 2)
            for i in range(64): a(f'v_mov_b32 v{V_ACC+i}, 0')
    a(f's_lshl_b32 s31, s24, 10'); a(f's_add_u32 m0, s31, {WPH}'); a(f's_lshl_b32 s32, s28, 12'); a('s_add_u32 s31, s31, s32')
    vm.issue(f'buffer_load_dwordx4 v3, s[44:47], s31 offen lds', 'wphi')
    def wread(F):
        s, f = divmod(F, 16)
        slot = s % NS
        un, c = divmod(f, 4)
        r = V_W + (F % R)*4
        base = V_L + 4*(slot >> 2) + c
        off = (slot & 3)*16384 + un*4096
        return [f'ds_read_b64_tr_b16 {vr(r,2)}, v{base} offset:{off}', f'ds_read_b64_tr_b16 {vr(r+2,2)}, v{base} offset:{off+2048}']
    issued = set(range(D))
    def run_stages(s0, s1, extra=None):
        for s in range(s0, s1):
            pend = []
            if extra and s in extra: pend += extra[s]
            nd = s + D if s < NKV else s + NS - 2
            if nd < NST and nd not in issued: pend += dma(nd); issued.add(nd)
            if s + DA < NKV: pend += act(s + DA)
            for f in range(16):
                F = s*16 + f
                un, c = divmod(f, 4)
                nxt = F + P
                rd = wread(nxt) if nxt < s1*16 else []
                n = 2*(min(F + P - 1, s1*16 - 1) - F)
                a(f's_waitcnt lgkmcnt({n})')
                w = V_W + (F % R)*4
                if s < NKV: kb = 2*s + (un >> 1); ai = (un & 1)*4 + c
                else: kb = 4*(s - NKV) + un; ai = c
                for t in range(2):
                    acc = vr(V_ACC + (ai*2 + t)*4)
                    srcc = '0' if (s == NKV and un == 0) else acc
                    a(f'{MF} {acc}, {vr(w)}, {ar((kb*2 + t)*4)}, {srcc}')
                    if t == 0:
                        if f == 16 - P and s + 1 < s1:
                            tags = [('dma', s+1)] + ([('act', s+1)] if s + 1 < NKV else [])
                            if s == 2: tags.append('wphi')
                            if s == SIG: tags.append('atom')
                            vm.wait(tags)
                            a('s_barrier')
                            if s == SIG:
                                a(f's_cmp_eq_u32 s24, 0'); a(f's_cbranch_scc0 {L}_nosig')
                                a('s_mov_b64 exec, 1')
                                a(f'global_atomic_add v{V_X+6}, v{V_X+7}, s[6:7] sc1')
                                a('s_mov_b64 exec, -1')
                                a.label(f'{L}_nosig')
                        for x in rd: a(x)
                    elif f < 16 - P:
                        if pend: emit(pend.pop(0))
                        if pend and len(pend) > 16 - P - 1 - f: emit(pend.pop(0))
            assert not pend
    vm.wait([('dma', 0), ('act', 0)])
    a('s_barrier')
    stamp(a, cfg, 1)
    for F in range(P):
        for x in wread(F): a(x)
    run_stages(0, NKV)
    stamp(a, cfg, 2)
    a(f"""
    v_lshrrev_b32 v12, 2, v1
    v_and_b32 v13, 3, v1
    v_lshlrev_b32 v13, 3, v13
    v_lshl_add_u32 v12, v12, 6, v13
    v_add_u32 v12, {WPH}, v12
    """)
    for hd in range(2):
        for fb in range(2):
            r = V_WP + (hd*2 + fb)*4
            a(f'ds_read_b64_tr_b16 {vr(r,2)}, v12 offset:{hd*2048 + fb*32}')
            a(f'ds_read_b64_tr_b16 {vr(r+2,2)}, v12 offset:{hd*2048 + fb*32 + 1024}')
    def prefetch_upto(n):
        for nd in range(NKV, n + 1):
            if nd not in issued:
                for sl in dma(nd): emit(sl)
                issued.add(nd)
    prefetch_upto(NKV - 3 + NS)
    a(f"""
    v_and_b32 v12, 15, v1
    v_lshrrev_b32 v13, 4, v1
    v_and_b32 v14, 7, v12
    v_lshlrev_b32 v14, 1, v14
    v_lshrrev_b32 v15, 3, v12
    v_or_b32 v14, v14, v15                ; s(t) = ((t&7)<<1) | (t>>3)
    v_xor_b32 v13, v13, v14
    v_lshlrev_b32 v13, 3, v13
    v_lshl_add_u32 v12, v12, 7, v13
    s_add_u32 s31, s37, {STG}
    v_add_u32 v{V_X}, s31, v12
    """)
    for c in range(1, 4): a(f'v_xor_b32 v{V_X+c}, {32*c}, v{V_X}')
    def cvt_frags():
        for t in range(2):
            for hd in range(2):
                for db in range(2):
                    acc = V_ACC + ((2*hd + db)*2 + t)*4
                    o = V_F + (t*2 + hd)*4 + db*2
                    a(f'v_cvt_pk_bf16_f32 v{o}, v{acc}, v{acc+1}')
                    a(f'v_cvt_pk_bf16_f32 v{o+1}, v{acc+2}, v{acc+3}')
    def logits():
        for t in range(2):
            for hd in range(2):
                for fb in range(2):
                    a(f'{MF} {vr(V_P + (t*2+hd)*8 + fb*4)}, {vr(V_WP + (hd*2+fb)*4)}, {vr(V_F + (t*2+hd)*4)}, 0')
    cvt_frags()
    a('s_waitcnt lgkmcnt(0)')
    logits()
    for t in range(2):
        for c in range(4):
            acc = V_ACC + ((4 + c)*2 + t)*4
            o = V_O + (t*4 + c)*2
            a(f'v_cvt_pk_bf16_f32 v{o}, v{acc}, v{acc+1}')
            a(f'v_cvt_pk_bf16_f32 v{o+1}, v{acc+2}, v{acc+3}')
            a(f'ds_write_b64 v{V_X+c}, {vr(o,2)} offset:{32768 + t*2048}')
    a('s_waitcnt lgkmcnt(0)')
    softmax_pm(a, V_P, V_O, V_T)
    for t in range(2):
        for hd in range(2):
            for c in range(4):
                a(f'ds_write_b64 v{V_X+c}, {vr(V_O + (t*2+hd)*8 + c*2, 2)} offset:{hd*16384 + t*2048}')
    a(f"""
    v_lshrrev_b32 v12, 2, v1              ; row 0..15
    v_and_b32 v13, 3, v1
    v_and_b32 v14, 7, v12
    v_lshlrev_b32 v14, 1, v14
    v_lshrrev_b32 v15, 3, v12
    v_or_b32 v14, v14, v15
    v_xor_b32 v13, v13, v14
    v_lshlrev_b32 v13, 3, v13
    v_lshl_add_u32 v12, v12, 7, v13       ; c = 0 address
    s_and_b32 s31, s24, 1
    s_lshl_b32 s31, s31, 6                ; sign*2*32
    s_lshr_b32 s32, s24, 1
    s_lshl_b32 s33, s32, 6                ; hd*2*32
    s_lshl_b32 s32, s32, 14
    s_add_u32 s32, s32, {STG}
    v_xor_b32 v13, s31, v12
    v_add_u32 v{V_X}, s32, v13
    v_xor_b32 v{V_X+1}, 32, v{V_X}
    v_xor_b32 v13, s33, v12
    v_add_u32 v{V_X+2}, {STG + 32768}, v13
    v_xor_b32 v{V_X+3}, 32, v{V_X+2}
    v_mov_b32 v{V_F}, 0x3f803f80
    v_mov_b32 v{V_F+1}, 0x3f803f80
    v_mov_b32 v{V_F+2}, 0x3f803f80
    v_mov_b32 v{V_F+3}, 0x3f803f80
    s_waitcnt lgkmcnt(0)
    s_barrier
    """)
    FR = V_P
    for ks in range(4):
        for q in range(4):
            r = FR + (ks*4 + q)*4
            a(f'ds_read_b64_tr_b16 {vr(r,2)}, v{V_X+q} offset:{ks*4096}')
            a(f'ds_read_b64_tr_b16 {vr(r+2,2)}, v{V_X+q} offset:{ks*4096 + 2048}')
        if ks == 0: a('s_waitcnt lgkmcnt(7)')
        if ks >= 1: a('s_waitcnt lgkmcnt(7)')
    prefetch_upto(NKV - 1 + NS)
    KV = V_T
    a('s_waitcnt lgkmcnt(0)')
    for ks in range(4):
        for aa in range(2):
            A = vr(FR + (ks*4 + aa)*4)
            for db in range(2):
                d = vr(KV + (aa*2 + db)*4)
                a(f'{MF} {d}, {A}, {vr(FR + (ks*4 + 2 + db)*4)}, {d if ks else 0}')
            d = vr(KV + 16 + aa*4)
            a(f'{MF} {d}, {A}, {vr(V_F)}, {d if ks else 0}')
    vm.wait([('dma', NKV)])
    a('s_barrier')
    for F in range(NKV*16, NKV*16 + P):
        for x in wread(F): a(x)
    a(f"""
    s_lshl_b32 s31, s28, 14
    s_add_u32 s31, s31, s37
    s_add_u32 s31, s31, {hex(KVACC)}
    v_lshl_add_u32 v{V_X+4}, v1, 2, s31
    v_and_b32 v12, 15, v1
    v_lshrrev_b32 v13, 4, v1
    v_lshrrev_b32 v14, 2, v12
    v_lshlrev_b32 v14, 4, v14
    v_lshl_add_u32 v14, v13, 2, v14
    v_and_b32 v15, 3, v12
    v_add_u32 v14, v14, v15
    s_lshl_b32 s31, s28, 9
    s_lshl_b32 s32, s24, 7
    s_add_u32 s31, s31, s32
    s_add_u32 s31, s31, {hex(ZACC)}
    v_lshl_add_u32 v14, v14, 2, s31
    v_lshl_add_u32 v{V_X+5}, v13, 4, s31
    s_lshl_b32 s31, s28, 2
    v_mov_b32 v{V_X+6}, s31
    v_mov_b32 v{V_X+7}, 1
    """)
    for i in range(1, 8):
        a(f'v_cmp_eq_u32 vcc, {i}, v12')
        a(f'v_cndmask_b32 v{KV+16}, v{KV+16}, v{KV+16+i}, vcc')
    for i in range(16):
        vm.issue(f'global_atomic_add_f32 v{V_X+4}, v{KV+i}, s[4:5] offset:{i*256}', 'atom')
    a('s_mov_b32 exec_lo, 0x00ff00ff'); a('s_mov_b32 exec_hi, 0x00ff00ff')
    vm.issue(f'global_atomic_add_f32 v14, v{KV+16}, s[4:5]', 'atom')
    a('s_mov_b64 exec, -1')
    stamp(a, cfg, 3)
    run_stages(NKV, NST)
    stamp(a, cfg, 4)
    cvt_frags()
    logits()
    softmax_pm(a, V_P, V_O, V_T)
    stamp(a, cfg, 5)
    a(f's_mov_b32 s33, 0')
    a.label(f'{L}_poll')
    a(f"""
    global_load_dword v12, v{V_X+6}, s[6:7] sc1
    s_add_u32 s33, s33, 1
    s_waitcnt vmcnt(0)
    v_readfirstlane_b32 s31, v12
    s_cmp_ge_u32 s31, 16
    s_cbranch_scc1 {L}_go
    s_sleep 1
    s_cmp_lt_u32 s33, 0x40000
    s_cbranch_scc1 {L}_poll
    """)
    a.label(f'{L}_go')
    LD = V_ACC
    for i in range(16): a(f'global_load_dword v{LD+i}, v{V_X+4}, s[4:5] offset:{i*256} sc1')
    a(f'global_load_dwordx4 {vr(LD+16)}, v{V_X+5}, s[4:5] sc1')
    a(f'global_load_dwordx4 {vr(LD+20)}, v{V_X+5}, s[4:5] offset:64 sc1')
    a(f"""
    s_mul_i32 s31, s24, 3072
    s_add_u32 s31, s31, {STG}
    v_add_u32 v12, s31, v3
    v_add_u32 v13, {STG}, v3
    s_waitcnt vmcnt(0)
    """)
    C = LD + 24
    for db in range(2):
        for aa in range(2):
            src = LD + (aa*2 + db)*4
            a(f'v_cvt_pk_bf16_f32 v{C+db*4+aa*2}, v{src}, v{src+1}')
            a(f'v_cvt_pk_bf16_f32 v{C+db*4+aa*2+1}, v{src+2}, v{src+3}')
    for i in range(4): a(f'v_cvt_pk_bf16_f32 v{C+8+i}, v{LD+16+2*i}, v{LD+17+2*i}')
    for q in range(3): a(f'ds_write_b128 v12, {vr(C+4*q)} offset:{q*1024}')
    a('s_waitcnt lgkmcnt(0)')
    a('s_barrier')
    G = V_T
    for q in range(12): a(f'ds_read_b128 {vr(G+4*q)}, v13 offset:{q*1024}')
    N = V_ACC
    for hd in range(2):
        a(f's_waitcnt lgkmcnt({6 if hd == 0 else 0})')
        for sg in range(2):
            for t in range(2):
                n = t*2 + hd
                for q in range(3):
                    d = vr(N + n*12 + q*4)
                    a(f'{MF} {d}, {vr(G + ((hd*2+sg)*3 + q)*4)}, {vr(V_O + n*8 + sg*4)}, {d if sg else 0}')
    srd(a, 20, 4, O, 4 << 20)
    a(f's_lshl_b32 s31, s28, 11')
    for n in (0, 2, 1, 3):
        t, hd = n >> 1, n & 1
        b = N + n*12
        a(f'v_add_f32 v{b+8}, {f2u(1e-6)}, v{b+8}')
        a(f'v_rcp_f32 v{b+8}, v{b+8}')
        for i in range(8): a(f'v_mul_f32 v{b+i}, v{b+8}, v{b+i}')
        for i in range(4): a(f'v_cvt_pk_bf16_f32 v{V_F+n*4+i}, v{b+2*i}, v{b+2*i+1}')
        a(f'buffer_store_dwordx4 {vr(V_F+n*4)}, v{V_AO+t}, s[20:23], s31 offen offset:{hd*1024}')
    stamp(a, cfg, 6)
    if cfg.get('stamps'):
        a('s_waitcnt vmcnt(0)')
        stamp(a, cfg, 7)
        stamp_out(a, cfg, 1, 8)
    a.label(f'{L}_end')
    a('s_endpgm')
    return (name, 256, 256, WPH + 4096), kernel_desc(name, 512, 256)

ALL = [gen_k0, gen_k1, gen_k2, gen_k3, gen_k4]
def build(kernels, cfg):
    a = Asm()
    launches, descs = [], []
    for g in kernels:
        l, d = g(a, cfg)
        launches.append(l); descs.append(d)
    return file_text(launches, a.text(), descs)

if __name__ == '__main__':
    assert all((i*4682) >> 16 == i//14 for i in range(256))
    open('k3.s', 'w').write(build([gen_k3], dict(stamps=True)))
```

```python
import sys, gen
cfg = eval(sys.argv[1]) if len(sys.argv) > 1 else dict(k3_nw=4)
out = sys.argv[2] if len(sys.argv) > 2 else 'sequential_preLN__linear_kernel_hedgehog__glu_gated_glu__prompt.s'
hdr = open('sequential_preLN__linear_kernel_hedgehog__glu_gated_glu__prompt.s.ref').read().split('; Override launch')[0]
txt = gen.build(gen.ALL, cfg)
open(out, 'w').write(hdr + txt)
print('wrote', out, len(hdr+txt))
```
